```python
import torch

def _softmax(x, axis=-1):
    return torch.softmax(x, dim=axis)
def _gelu(x):
    return torch.nn.functional.gelu(x, approximate="tanh")
def _silu(x):
    return torch.nn.functional.silu(x)
def _sigmoid(x):
    return torch.sigmoid(x)
def _layernorm(x, axis=-1, eps=1e-5):
    m = x.mean(dim=axis, keepdim=True)
    v = x.var(dim=axis, keepdim=True, unbiased=False)
    return (x - m) / torch.sqrt(v + eps)
def _scatter_add(tgt, idx, src, axis=0):
    return tgt.clone().index_add_(axis, idx, src)
def _segment_sum(src, seg, n):
    out = torch.zeros((n,) + src.shape[1:], dtype=src.dtype)
    return out.index_add_(0, seg, src)
def _pad(x, pw):
    flat = tuple(v for pair in reversed(pw) for v in pair)
    return torch.nn.functional.pad(x, flat)

kernel_name = 'concat_heads__sliding_block_cached__gqa_block_cached__decode'

def setup_inputs():

    _w = (lambda a: (lambda t: t.to(torch.bfloat16) if t.is_floating_point() else t)(torch.as_tensor(a)))
    def _A_setup():
        B, Sq, D = 2, 1, 512
        Hq, Hkv, Sk, Dh = 32, 8, 16384, 128
        assert Hq % Hkv == 0, (Hq, Hkv)
        return {
            "x": _w((lambda *s: torch.randn(*s, dtype=torch.bfloat16) * 0.8)(B, Sq, D)),
            "k_cache": _w((lambda *s: torch.randn(*s, dtype=torch.bfloat16) * 1.6)(B, Hkv, Sk, Dh)),
            "v_cache": _w((lambda *s: torch.randn(*s, dtype=torch.bfloat16) * 0.2)(B, Hkv, Sk, Dh)),
            "wq": _w((lambda *s: torch.randn(*s, dtype=torch.bfloat16) * 1.6)(D, Hq * Dh) * (D ** -0.5)),
            "wo": _w((lambda *s: torch.randn(*s, dtype=torch.bfloat16) * 0.2)(Hq * Dh, D) * ((Hq * Dh) ** -0.5)),
        }
    _A_in = _A_setup()

    def _B_setup():
        B, Sq, D = 2, 1, 512
        Hq, Hkv, Sk, Dh = 32, 8, 16384, 128
        assert Hq % Hkv == 0, (Hq, Hkv)
        return {
            "x": _w((lambda *s: torch.randn(*s, dtype=torch.bfloat16) * 0.8)(B, Sq, D)),
            "k_cache": _w((lambda *s: torch.randn(*s, dtype=torch.bfloat16) * 1.6)(B, Hkv, Sk, Dh)),
            "v_cache": _w((lambda *s: torch.randn(*s, dtype=torch.bfloat16) * 0.2)(B, Hkv, Sk, Dh)),
            "wq": _w((lambda *s: torch.randn(*s, dtype=torch.bfloat16) * 1.6)(D, Hq * Dh) * (D ** -0.5)),
            "wo": _w((lambda *s: torch.randn(*s, dtype=torch.bfloat16) * 0.2)(Hq * Dh, D) * ((Hq * Dh) ** -0.5)),
        }
    _B_in = _B_setup()

    return {
        "A_x": _A_in["x"],
        "A_k_cache": _A_in["k_cache"],
        "A_v_cache": _A_in["v_cache"],
        "A_wq": _A_in["wq"],
        "A_wo": _A_in["wo"],
        "B_x": _B_in["x"],
        "B_k_cache": _B_in["k_cache"],
        "B_v_cache": _B_in["v_cache"],
        "B_wq": _B_in["wq"],
        "B_wo": _B_in["wo"],
    }

def reference(A_x, A_k_cache, A_v_cache, A_wq, A_wo, B_x, B_k_cache, B_v_cache, B_wq, B_wo):
    def _A_ref(x, k_cache, v_cache, wq, wo):
        B, Sq, D = x.shape
        Hq, Dh = 32, 128
        Hkv, Sk = k_cache.shape[1], k_cache.shape[2]
        W = min(4096, max(256, Sk // 4))
        rep = Hq // Hkv
        q = (lambda x, *d: x.permute(*d))((x @ wq).reshape(B, Sq, Hq, Dh), 0, 2, 1, 3)
        k = (lambda x, n, axis: torch.repeat_interleave(x, n, dim=axis))(k_cache[:, :, Sk - W:, :], rep, axis=1)
        v = (lambda x, n, axis: torch.repeat_interleave(x, n, dim=axis))(v_cache[:, :, Sk - W:, :], rep, axis=1)
        scores = torch.einsum("bhqd,bhkd->bhqk", q, k) * (Dh ** -0.5)
        p = _softmax(scores, axis=-1)
        o = torch.einsum("bhqk,bhkd->bhqd", p, v)
        return (lambda x, *d: x.permute(*d))(o, 0, 2, 1, 3).reshape(B, Sq, Hq * Dh) @ wo

    def _B_ref(x, k_cache, v_cache, wq, wo):
        B, Sq, D = x.shape
        Hq, Dh = 32, 128
        Hkv = k_cache.shape[1]
        rep = Hq // Hkv
        q = (lambda x, *d: x.permute(*d))((x @ wq).reshape(B, Sq, Hq, Dh), 0, 2, 1, 3)
        k = (lambda x, n, axis: torch.repeat_interleave(x, n, dim=axis))(k_cache, rep, axis=1)
        v = (lambda x, n, axis: torch.repeat_interleave(x, n, dim=axis))(v_cache, rep, axis=1)
        scores = torch.einsum("bhqd,bhkd->bhqk", q, k) * (Dh ** -0.5)
        p = _softmax(scores, axis=-1)
        o = torch.einsum("bhqk,bhkd->bhqd", p, v)
        return (lambda x, *d: x.permute(*d))(o, 0, 2, 1, 3).reshape(B, Sq, Hq * Dh) @ wo

    a = _A_ref(A_x, A_k_cache, A_v_cache, A_wq, A_wo)
    b = _B_ref(B_x, B_k_cache, B_v_cache, B_wq, B_wo)
    return torch.concatenate([a, b], axis=-1)
```

```python
KN = "concat_heads__sliding_block_cached__gqa_block_cached__decode"
HDR = """; Kernarg layout for this problem (104 bytes, ptrs only, base s[0:1]):
"""

class Asm:
    def __init__(self):
        self.lines = []
    def __call__(self, s=""):
        for l in s.split("\n"):
            self.lines.append("    " + l.strip() if l.strip() and not l.strip().endswith(":") else l.strip())
    def label(self, n):
        self.lines.append(n + ":")
    def text(self):
        return "\n".join(self.lines) + "\n"

def kernel_block(name, body, vgpr, sgpr, accum=None, extra_dirs=""):
    if accum is None:
        accum = (vgpr + 3) // 4 * 4
    return (f".text\n.globl {name}\n.p2align 8\n.type {name},@function\n{name}:\n" + body,
            f""".section .rodata,"a"
.p2align 6
.amdhsa_kernel {name}
  .amdhsa_next_free_vgpr {vgpr}
  .amdhsa_next_free_sgpr {sgpr}
  .amdhsa_accum_offset {accum}
  .amdhsa_group_segment_fixed_size 0
  .amdhsa_kernarg_size 104
  .amdhsa_user_sgpr_count 2
  .amdhsa_user_sgpr_kernarg_segment_ptr 1
  .amdhsa_system_sgpr_workgroup_id_x 1
{extra_dirs}.end_amdhsa_kernel
""")

def file_text(launch_lines, kernels):
    s = HDR
    for l in launch_lines:
        s += l + "\n"
    s += '.amdgcn_target "amdgcn-amd-amdhsa--gfx950"\n'
    for (code, desc) in kernels:
        s += code
    for (code, desc) in kernels:
        s += desc
    return s
```

```python
import sys
from asmlib import *

def gen(nw=4, nwg=256, depth=2, flags="", kpat="quad", lds=0, order="kv", interleave=False, vg=None, wmap="id", stamps=False):
    NW = nw * nwg
    kB = 262144 // NW; kA = 65536 // NW
    tB = kB // 32; tA = max(kA // 32, 1)
    assert kB % 32 == 0 and kA % 32 == 0
    a = Asm()
    a(f"s_cmp_ge_u32 s2, {nwg}")
    a("s_cbranch_scc1 L_end")
    a("s_memrealtime s[40:41]")
    a("s_load_dwordx4 s[4:7], s[0:1], 8")
    a("s_load_dwordx4 s[8:11], s[0:1], 48")
    a("s_load_dwordx2 s[12:13], s[0:1], 96")
    a("v_lshrrev_b32 v1, 6, v0")
    a("s_nop 0")
    a("v_readfirstlane_b32 s3, v1")
    a("v_and_b32 v0, 63, v0")
    a("v_lshlrev_b32 v3, 4, v0")
    if kpat == "quad":
        a("v_and_b32 v4, 15, v0")
        a("v_lshrrev_b32 v5, 2, v4")
        a("v_lshlrev_b32 v5, 8, v5")
        a("v_lshrrev_b32 v6, 4, v0")
        a("v_lshlrev_b32 v6, 6, v6")
        a("v_and_b32 v4, 3, v0")
        a("v_lshlrev_b32 v4, 4, v4")
        a("v_add3_u32 v2, v4, v5, v6")
    elif kpat == "row16":
        a("v_and_b32 v4, 15, v0")
        a("v_lshlrev_b32 v4, 8, v4")
        a("v_lshrrev_b32 v6, 4, v0")
        a("v_lshlrev_b32 v6, 4, v6")
        a("v_add_u32 v2, v4, v6")
    else:
        a("v_mov_b32 v2, v3")
    a("s_waitcnt lgkmcnt(0)")
    for d, s in ((16, 4), (20, 6), (24, 8), (28, 10), (32, 12)):
        a(f"s_mov_b32 s{d}, s{s}")
        a(f"s_and_b32 s{d+1}, s{s+1}, 0xffff")
        a(f"s_mov_b32 s{d+2}, {0x4000000 if d != 32 else 0x100000}")
        a(f"s_mov_b32 s{d+3}, 0x20000")
    if wmap == "xm":
        a("s_and_b32 s50, s2, 7")
        a(f"s_mul_i32 s50, s50, {nwg // 8}")
        a("s_lshr_b32 s51, s2, 3")
        a("s_add_u32 s2, s50, s51")
    a(f"s_mul_i32 s36, s2, {nw}")
    a("s_add_u32 s36, s36, s3")
    if interleave:
        a(f"s_mul_i32 s37, s2, {kB * nw * 256}")
        a(f"s_lshl_b32 s44, s3, 13")
        a("s_add_u32 s37, s37, s44")
        stepB = 8192 * nw
        a(f"s_mul_i32 s38, s2, {kA * nw}")
        a("s_lshr_b32 s39, s38, 12")
        a("s_and_b32 s38, s38, 4095")
        a("s_lshl_b32 s39, s39, 14")
        a("s_add_u32 s38, s38, s39")
        a("s_add_u32 s38, s38, 12288")
        a("s_lshl_b32 s38, s38, 8")
        a("s_add_u32 s38, s38, s44")
        stepA = 8192 * nw
    elif wmap == "strided":
        a(f"s_mul_i32 s37, s36, 8192")
        stepB = 8192 * NW
        assert tA <= 2
        a("s_lshr_b32 s39, s36, 7")
        a("s_and_b32 s38, s36, 127")
        a("s_lshl_b32 s39, s39, 22")
        a("s_lshl_b32 s38, s38, 13")
        a("s_add_u32 s38, s38, s39")
        a("s_add_u32 s38, s38, 12288*256")
        stepA = (NW >> 7) << 22
    else:
        a(f"s_mul_i32 s37, s36, {kB * 256}")
        stepB = 8192
        a(f"s_mul_i32 s38, s36, {kA}")
        a("s_lshr_b32 s39, s38, 12")
        a("s_and_b32 s38, s38, 4095")
        a("s_lshl_b32 s39, s39, 14")
        a("s_add_u32 s38, s38, s39")
        a("s_add_u32 s38, s38, 12288")
        a("s_lshl_b32 s38, s38, 8")
        stepA = 8192
    tiles = [("B", t) for t in range(tB)] + [("A", t) for t in range(tA)]
    base = 8
    def issue(idx):
        br, t = tiles[idx]
        slot = idx % depth
        r0 = base + slot * 64
        srdk, srdv = (24, 28) if br == "B" else (16, 20)
        sb = 37 if br == "B" else 38
        step = stepB if br == "B" else stepA
        a(f"s_add_u32 s42, s{sb}, {t * step}")
        a(f"s_add_u32 s43, s42, 4096")
        for j in range(8):
            if kpat == "row16":
                so = 42 if j < 4 else 43
                off = (j % 4) * 64
            else:
                so = 42 if j < 4 else 43
                off = (j % 4) * 1024
            a(f"buffer_load_dwordx4 v[{r0+4*j}:{r0+4*j+3}], v2, s[{srdk}:{srdk+3}], s{so} offen offset:{off} {flags}")
        for j in range(8):
            so = 42 if j < 4 else 43
            off = (j % 4) * 1024
            a(f"buffer_load_dwordx4 v[{r0+32+4*j}:{r0+32+4*j+3}], v3, s[{srdv}:{srdv+3}], s{so} offen offset:{off} {flags}")
    n = len(tiles)
    for i in range(min(depth, n)):
        issue(i)
    a("v_mov_b32 v7, 0")
    for i in range(n):
        rem = min(depth, n - i) - 1
        a(f"s_waitcnt vmcnt({min(rem * 16, 63)})")
        if stamps:
            a(f"s_memrealtime s[{52 + 2*i}:{53 + 2*i}]")
        r0 = base + (i % depth) * 64
        for j in range(16):
            a(f"v_xor_b32 v7, v7, v{r0 + 4*j}")
        if i + depth < n:
            issue(i + depth)
    a("s_memrealtime s[44:45]")
    a("s_getreg_b32 s46, hwreg(HW_REG_HW_ID)")
    a("s_getreg_b32 s47, hwreg(HW_REG_XCC_ID)")
    a("s_waitcnt lgkmcnt(0)")
    a("v_mov_b32 v8, s40")
    a("v_mov_b32 v9, s44")
    a("v_mov_b32 v10, s46")
    a("v_mov_b32 v11, s47")
    a("s_lshl_b32 s36, s36, 4")
    a("v_mov_b32 v1, s36")
    a("v_cmp_eq_u32 vcc, 0, v0")
    a("s_and_saveexec_b64 s[48:49], vcc")
    a("buffer_store_dwordx4 v[8:11], v1, s[32:35], 0 offen")
    a("s_mov_b64 exec, s[48:49]")
    if stamps:
        a("v_cmp_eq_u32 vcc, 0, v0")
        a("s_and_saveexec_b64 s[48:49], vcc")
        a("s_lshl_b32 s36, s36, 2")
        a("s_add_u32 s36, s36, 0x40000")
        a("v_mov_b32 v1, s36")
        for i in range(n):
            a(f"v_mov_b32 v8, s{52 + 2*i}")
            a(f"buffer_store_dword v8, v1, s[32:35], 0 offen offset:{4*i}")
        a("s_mov_b64 exec, s[48:49]")
    a("v_add_u32 v1, 0x80000, v1")
    a("v_cmp_eq_u32 vcc, 0x12345678, v7")
    a("s_and_saveexec_b64 s[48:49], vcc")
    a("s_cbranch_execz L_end")
    a("buffer_store_dword v7, v1, s[32:35], 0 offen")
    a.label("L_end")
    a("s_endpgm")
    vg = vg or (base + depth * 64)
    k = kernel_block(KN + "_kernel", a.text(), vg, 96)
    return file_text([f"; @launch grid=({nwg},1,1) block=({nw*64},1,1) lds={lds}"], [k])

if __name__ == "__main__":
    cfgs = {
        "t_id": dict(nw=4, depth=2, flags="nt", stamps=True),
        "t_st": dict(nw=4, depth=2, flags="nt", wmap="strided", stamps=True),
        "t_id_d1": dict(nw=4, depth=1, flags="nt", stamps=True),
    }
    old2 = {
        "m_id": dict(nw=4, depth=3, flags="nt"),
        "m_xm": dict(nw=4, depth=3, flags="nt", wmap="xm"),
        "m_st": dict(nw=4, depth=3, flags="nt", wmap="strided"),
        "m_id_d1": dict(nw=4, depth=1, flags="nt"),
        "m_st_d1": dict(nw=4, depth=1, flags="nt", wmap="strided"),
        "m_st_d2": dict(nw=4, depth=2, flags="nt", wmap="strided"),
        "m_st_w8d1": dict(nw=8, depth=1, flags="nt", wmap="strided"),
    }
    old = {
        "s_w4_d1": dict(nw=4, depth=1),
        "s_w4_d2": dict(nw=4, depth=2),
        "s_w4_d3": dict(nw=4, depth=3),
        "s_w4_d3_nt": dict(nw=4, depth=3, flags="nt"),
        "s_w4_d2_nt": dict(nw=4, depth=2, flags="nt"),
        "s_w8_d1": dict(nw=8, depth=1),
        "s_w8_d2": dict(nw=8, depth=2),
        "s_w8_d2_nt": dict(nw=8, depth=2, flags="nt"),
        "s_w8_d3_nt": dict(nw=8, depth=3, flags="nt"),
        "s_w4_d3_row16": dict(nw=4, depth=3, kpat="row16"),
        "s_w4_d3_row16_nt": dict(nw=4, depth=3, kpat="row16", flags="nt"),
        "s_w4_d3_lin_nt": dict(nw=4, depth=3, kpat="lin", flags="nt"),
        "s_w4_d3_il_nt": dict(nw=4, depth=3, flags="nt", interleave=True),
        "s_w4_d3_sc1": dict(nw=4, depth=3, flags="sc1"),
        "s_w4_d3_sc01nt": dict(nw=4, depth=3, flags="sc0 sc1 nt"),
        "s_w4x512_d2_nt": dict(nw=4, nwg=512, depth=2, flags="nt"),
    }
    for n, c in cfgs.items():
        open(f"mb/{n}.s", "w").write(gen(**c))
    print(" ".join(cfgs))
```

```python
import sys
from asmlib import *
from mb_stream import *

def gen_lat(depth=2, flags="nt", probe="vload", nprobe=24, sleep=8, stream=True):
    nw = 4; nwg = 256; NW = 1024
    kB = 256; kA = 64; tB = 8; tA = 2
    a = Asm()
    a(f"s_cmp_ge_u32 s2, {nwg}")
    a("s_cbranch_scc1 L_end")
    a("s_load_dwordx4 s[4:7], s[0:1], 8")
    a("s_load_dwordx4 s[8:11], s[0:1], 48")
    a("s_load_dwordx2 s[12:13], s[0:1], 96")
    a("v_lshrrev_b32 v1, 6, v0")
    a("s_nop 0")
    a("v_readfirstlane_b32 s3, v1")
    a("v_and_b32 v0, 63, v0")
    a("v_lshlrev_b32 v3, 4, v0")
    a("v_mov_b32 v2, v3")
    a("s_waitcnt lgkmcnt(0)")
    for d, s in ((16, 4), (20, 6), (24, 8), (28, 10), (32, 12)):
        a(f"s_mov_b32 s{d}, s{s}")
        a(f"s_and_b32 s{d+1}, s{s+1}, 0xffff")
        a(f"s_mov_b32 s{d+2}, {0x4000000 if d != 32 else 0x4000000}")
        a(f"s_mov_b32 s{d+3}, 0x20000")
    a("s_cmp_eq_u32 s3, 4")
    a("s_cbranch_scc1 L_probe")
    if stream:
        a(f"s_mul_i32 s36, s2, {nw}")
        a("s_add_u32 s36, s36, s3")
        a(f"s_mul_i32 s37, s36, {kB * 256}")
        a(f"s_mul_i32 s38, s36, {kA}")
        a("s_lshr_b32 s39, s38, 12")
        a("s_and_b32 s38, s38, 4095")
        a("s_lshl_b32 s39, s39, 14")
        a("s_add_u32 s38, s38, s39")
        a("s_add_u32 s38, s38, 12288")
        a("s_lshl_b32 s38, s38, 8")
        tiles = [("B", t) for t in range(tB)] + [("A", t) for t in range(tA)]
        base = 8
        def issue(idx):
            br, t = tiles[idx]
            r0 = base + (idx % depth) * 64
            srdk, srdv = (24, 28) if br == "B" else (16, 20)
            sb = 37 if br == "B" else 38
            a(f"s_add_u32 s42, s{sb}, {t * 8192}")
            a(f"s_add_u32 s43, s42, 4096")
            for j in range(8):
                a(f"buffer_load_dwordx4 v[{r0+4*j}:{r0+4*j+3}], v2, s[{srdk}:{srdk+3}], s{42 if j < 4 else 43} offen offset:{(j%4)*1024} {flags}")
            for j in range(8):
                a(f"buffer_load_dwordx4 v[{r0+32+4*j}:{r0+32+4*j+3}], v3, s[{srdv}:{srdv+3}], s{42 if j < 4 else 43} offen offset:{(j%4)*1024} {flags}")
        n = len(tiles)
        for i in range(min(depth, n)):
            issue(i)
        for i in range(n):
            rem = min(depth, n - i) - 1
            a(f"s_waitcnt vmcnt({min(rem * 16, 63)})")
            if i + depth < n:
                issue(i + depth)
    a("s_endpgm")
    a.label("L_probe")
    a("s_lshl_b32 s36, s2, 16")
    a("s_add_u32 s36, s36, 0x100000")
    a("s_lshl_b32 s37, s2, 8")
    a("v_mov_b32 v4, 0")
    a("v_lshlrev_b32 v5, 3, v0")
    a("s_memtime s[50:51]")
    a("s_waitcnt lgkmcnt(0)")
    for p in range(nprobe):
        a("s_memtime s[44:45]")
        a("s_waitcnt lgkmcnt(0)")
        if probe == "vload":
            a(f"buffer_load_dwordx2 v[6:7], v5, s[32:35], s36 offen sc1")
            a("s_waitcnt vmcnt(0)")
        elif probe == "vstore":
            a(f"buffer_store_dwordx2 v[6:7], v5, s[32:35], s36 offen sc1")
            a("s_waitcnt vmcnt(0)")
        elif probe == "sload":
            a("s_add_u32 s52, s12, s36")
            a("s_addc_u32 s53, s13, 0")
            a("s_load_dwordx2 s[54:55], s[52:53], 0")
            a("s_waitcnt lgkmcnt(0)")
        elif probe == "atomic":
            a("v_mov_b32 v6, 1")
            a("s_mov_b64 s[56:57], exec")
            a("s_mov_b64 exec, 1")
            a(f"buffer_atomic_add v6, v4, s[32:35], s36 offen sc0")
            a("s_waitcnt vmcnt(0)")
            a("s_mov_b64 exec, s[56:57]")
        a("s_memtime s[46:47]")
        a("s_waitcnt lgkmcnt(0)")
        a("s_sub_u32 s46, s46, s44")
        a("s_sub_u32 s48, s44, s50")
        a(f"v_writelane_b32 v8, s46, {p}")
        a(f"v_writelane_b32 v8, s48, {p + 32}")
        a("s_add_u32 s36, s36, 1024")
        a(f"s_sleep {sleep}")
    a("v_lshlrev_b32 v5, 2, v0")
    a("buffer_store_dword v8, v5, s[32:35], s37 offen")
    a.label("L_end")
    a("s_endpgm")
    k = kernel_block(KN + "_kernel", a.text(), 8 + depth * 64, 96)
    return file_text([f"; @launch grid=({nwg},1,1) block=(320,1,1) lds=0"], [k])

if __name__ == "__main__":
    cfgs = {
        "l_vload_d2": dict(probe="vload", sleep=20),
        "l_vstore_d2": dict(probe="vstore", sleep=20),
        "l_sload_d2": dict(probe="sload", sleep=20),
        "l_atomic_d2": dict(probe="atomic", sleep=20),
        "l_vload_d1": dict(probe="vload", depth=1, sleep=20),
        "l_vload_idle": dict(probe="vload", stream=False, sleep=20),
        "l_vstore_idle": dict(probe="vstore", stream=False, sleep=20),
        "l_sload_idle": dict(probe="sload", stream=False, sleep=20),
        "l_atomic_idle": dict(probe="atomic", stream=False, sleep=20),
    }
    for n, c in cfgs.items():
        open(f"mb/{n}.s", "w").write(gen_lat(**c))
    print(" ".join(cfgs))
```
